```python
import torch

def _softmax(x, axis=-1):
    return torch.softmax(x, dim=axis)
def _gelu(x):
    return torch.nn.functional.gelu(x, approximate="tanh")
def _silu(x):
    return torch.nn.functional.silu(x)
def _sigmoid(x):
    return torch.sigmoid(x)
def _layernorm(x, axis=-1, eps=1e-5):
    m = x.mean(dim=axis, keepdim=True)
    v = x.var(dim=axis, keepdim=True, unbiased=False)
    return (x - m) / torch.sqrt(v + eps)
def _scatter_add(tgt, idx, src, axis=0):
    return tgt.clone().index_add_(axis, idx, src)
def _segment_sum(src, seg, n):
    out = torch.zeros((n,) + src.shape[1:], dtype=src.dtype)
    return out.index_add_(0, seg, src)
def _pad(x, pw):
    flat = tuple(v for pair in reversed(pw) for v in pair)
    return torch.nn.functional.pad(x, flat)

kernel_name = 'recurrent_scan__gqa_block_cached__glu_gated_geglu__decode'

def setup_inputs():

    _w = (lambda a: (lambda t: t.to(torch.bfloat16) if t.is_floating_point() else t)(torch.as_tensor(a)))
    def _A_setup():
        B, Sq, D = 1, 1, 576
        Hq, Hkv, Sk, Dh = 32, 16, 65536, 128
        assert Hq % Hkv == 0, (Hq, Hkv)
        return {
            "x": _w((lambda *s: torch.randn(*s, dtype=torch.bfloat16) * 0.4)(B, Sq, D)),
            "k_cache": _w((lambda *s: torch.randn(*s, dtype=torch.bfloat16) * 1.6)(B, Hkv, Sk, Dh)),
            "v_cache": _w((lambda *s: torch.randn(*s, dtype=torch.bfloat16) * 1.6)(B, Hkv, Sk, Dh)),
            "wq": _w((lambda *s: torch.randn(*s, dtype=torch.bfloat16) * 1.6)(D, Hq * Dh) * (D ** -0.5)),
            "wo": _w((lambda *s: torch.randn(*s, dtype=torch.bfloat16) * 1.6)(Hq * Dh, D) * ((Hq * Dh) ** -0.5)),
        }
    _A_in = _A_setup()

    def _B_setup():
        B, S, Dm, Df = 1, 1, 576, 4608
        return {
            "x": _w((lambda *s: torch.randn(*s, dtype=torch.bfloat16) * 0.4)(B, S, Dm)),
            "w_gate": _w((lambda *s: torch.randn(*s, dtype=torch.bfloat16) * 1.6)(Dm, Df) * (Dm ** -0.5)),
            "w_up": _w((lambda *s: torch.randn(*s, dtype=torch.bfloat16) * 1.6)(Dm, Df) * (Dm ** -0.5)),
            "w_down": _w((lambda *s: torch.randn(*s, dtype=torch.bfloat16) * 1.6)(Df, Dm) * (Df ** -0.5)),
        }
    _B_in = _B_setup()

    return {
        "A_x": _A_in["x"],
        "A_k_cache": _A_in["k_cache"],
        "A_v_cache": _A_in["v_cache"],
        "A_wq": _A_in["wq"],
        "A_wo": _A_in["wo"],
        "B_x": _B_in["x"],
        "B_w_gate": _B_in["w_gate"],
        "B_w_up": _B_in["w_up"],
        "B_w_down": _B_in["w_down"],
    }

def reference(A_x, A_k_cache, A_v_cache, A_wq, A_wo, B_x, B_w_gate, B_w_up, B_w_down):
    def _A_ref(x, k_cache, v_cache, wq, wo):
        B, Sq, D = x.shape
        Hq, Dh = 32, 128
        Hkv = k_cache.shape[1]
        rep = Hq // Hkv
        q = (lambda x, *d: x.permute(*d))((x @ wq).reshape(B, Sq, Hq, Dh), 0, 2, 1, 3)
        k = (lambda x, n, axis: torch.repeat_interleave(x, n, dim=axis))(k_cache, rep, axis=1)
        v = (lambda x, n, axis: torch.repeat_interleave(x, n, dim=axis))(v_cache, rep, axis=1)
        scores = torch.einsum("bhqd,bhkd->bhqk", q, k) * (Dh ** -0.5)
        p = _softmax(scores, axis=-1)
        o = torch.einsum("bhqk,bhkd->bhqd", p, v)
        return (lambda x, *d: x.permute(*d))(o, 0, 2, 1, 3).reshape(B, Sq, Hq * Dh) @ wo

    def _B_ref(x, w_gate, w_up, w_down):
        g = torch.einsum("bsd,df->bsf", x, w_gate)
        u = torch.einsum("bsd,df->bsf", x, w_up)
        h = _gelu(g) * u
        return torch.einsum("bsf,fd->bsd", h, w_down)

    x = A_x
    xn = _layernorm(x, axis=-1)
    s = _A_ref(xn, A_k_cache, A_v_cache, A_wq, A_wo)
    g = _silu(_B_ref(xn, B_w_gate, B_w_up, B_w_down))
    return x + s * g
```

```python
import struct, sys

def f32hex(x):
    return "0x%08x" % struct.unpack("<I", struct.pack("<f", x))[0]

REF = open('recurrent_scan__gqa_block_cached__glu_gated_geglu__decode.s.ref').read()
HEADER = REF.split('; Override launch')[0]

WS_Q    = 0
WS_H    = 8192
WS_ML   = 32768
WS_PO   = 65536
WS_PSUM = 2097152
WS_DSUM = 3145728
WS_SIZE = 1 << 30

NSPLIT = 64
C_SCALE = (128 ** -0.5) * 1.4426950408889634

out = []
def E(s=""):
    out.append(s)

def load_ptrs():
    E("    s_load_dwordx16 s[16:31], s[0:1], 0")
    E("    s_load_dwordx8 s[32:39], s[0:1], 64")

def srd(dst, src, nbytes):
    E(f"    s_mov_b32 s{dst}, s{src}")
    E(f"    s_and_b32 s{dst+1}, s{src+1}, 0xffff")
    E(f"    s_mov_b32 s{dst+2}, {nbytes}")
    E(f"    s_mov_b32 s{dst+3}, 0x00020000")

def bf16r(dst, src):
    E(f"    v_cvt_pk_bf16_f32 v{dst}, v{src}, v{src}")
    E(f"    v_and_b32 v{dst}, 0xffff0000, v{dst}")

def kernel_begin(name):
    E(".p2align 8")
    E(f".globl {name}")
    E(f".type {name},@function")
    E(f"{name}:")

kds = []
def kd(name, vgpr, sgpr=102):
    kds.append((name, vgpr, sgpr))

def emit_kds():
    E(".section .rodata,\"a\"")
    for (name, vgpr, sgpr) in kds:
        E(".p2align 6")
        E(f".amdhsa_kernel {name}")
        E(f"  .amdhsa_next_free_vgpr {vgpr}")
        E(f"  .amdhsa_next_free_sgpr {sgpr}")
        E(f"  .amdhsa_accum_offset {((vgpr+3)//4)*4}")
        E("  .amdhsa_group_segment_fixed_size 0")
        E("  .amdhsa_kernarg_size 96")
        E("  .amdhsa_user_sgpr_count 2")
        E("  .amdhsa_user_sgpr_kernarg_segment_ptr 1")
        E("  .amdhsa_system_sgpr_workgroup_id_x 1")
        E(".end_amdhsa_kernel")

def row_reduce(regs, op="add"):
    ins = {"add": "v_add_f32_dpp", "max": "v_max_f32_dpp"}[op]
    for step in (8, 4, 2, 1):
        for r in regs:
            E(f"    {ins} v{r}, v{r}, v{r} row_ror:{step} row_mask:0xf bank_mask:0xf")
        if len(regs) < 3:
            E("    s_nop 1")

def sum16(base):
    for st in (1, 2, 4, 8):
        for k in range(0, 16, 2*st):
            E(f"    v_add_f32 v{base+k}, v{base+k}, v{base+k+st}")

def gen_k1():
    name = "k1_proj_kernel"
    kernel_begin(name)
    E("    s_cmp_ge_u32 s2, 272")
    E("    s_cbranch_scc1 K1_exit")
    load_ptrs()
    E("    v_lshlrev_b32 v1, 2, v0")
    E("    s_waitcnt lgkmcnt(0)")
    srd(40, 16, 1152)
    E("    buffer_load_dword v2, v1, s[40:43], 0 offen")
    E("    buffer_load_dword v3, v1, s[40:43], 0 offen offset:1024")
    E("    v_cmp_gt_u32 vcc, 32, v0")
    E("    s_mov_b64 s[44:45], vcc")
    E("    s_waitcnt vmcnt(0)")
    E("    v_lshlrev_b32 v4, 16, v2")
    E("    v_and_b32 v5, 0xffff0000, v2")
    E("    v_lshlrev_b32 v6, 16, v3")
    E("    v_and_b32 v7, 0xffff0000, v3")
    E("    v_add_f32 v8, v4, v5")
    E("    v_add_f32 v9, v6, v7")
    E("    v_add_f32 v8, v8, v9")
    E("    s_nop 1")
    row_reduce([8])
    E("    v_lshrrev_b32 v10, 4, v0")
    E("    v_lshlrev_b32 v10, 2, v10")
    E("    ds_write_b32 v10, v8 offset:8192")
    E("    s_waitcnt lgkmcnt(0)")
    E("    s_barrier")
    E("    v_mov_b32 v11, 0")
    for k in range(4):
        E(f"    ds_read_b128 v[{12+4*k}:{15+4*k}], v11 offset:{8192+16*k}")
    E("    s_waitcnt lgkmcnt(0)")
    sum16(12)
    E(f"    v_mul_f32 v28, {f32hex(1.0/576)}, v12")
    E("    v_sub_f32 v12, v4, v28")
    E("    v_sub_f32 v13, v5, v28")
    E("    v_sub_f32 v14, v6, v28")
    E("    v_sub_f32 v15, v7, v28")
    E("    v_mul_f32 v16, v14, v14")
    E("    v_fmac_f32 v16, v15, v15")
    E("    v_cndmask_b32 v16, 0, v16, s[44:45]")
    E("    v_fmac_f32 v16, v12, v12")
    E("    v_fmac_f32 v16, v13, v13")
    E("    s_nop 1")
    row_reduce([16])
    E("    s_barrier")
    E("    ds_write_b32 v10, v16 offset:8192")
    E("    s_waitcnt lgkmcnt(0)")
    E("    s_barrier")
    for k in range(4):
        E(f"    ds_read_b128 v[{12+4*k}:{15+4*k}], v11 offset:{8192+16*k}")
    E("    s_waitcnt lgkmcnt(0)")
    sum16(12)
    E(f"    v_mul_f32 v29, {f32hex(1.0/576)}, v12")
    bf16r(28, 28)
    bf16r(29, 29)
    E(f"    v_add_f32 v29, {f32hex(1e-5)}, v29")
    bf16r(29, 29)
    E("    v_sqrt_f32 v29, v29")
    E("    s_nop 1")
    bf16r(29, 29)
    E("    v_rcp_f32 v30, v29")
    E("    s_nop 1")
    for (src, dst) in ((4, 12), (5, 13), (6, 14), (7, 15)):
        E(f"    v_sub_f32 v{dst}, v{src}, v28")
        bf16r(dst, dst)
        E(f"    v_mul_f32 v31, v{dst}, v30")
        E(f"    v_fma_f32 v32, -v29, v31, v{dst}")
        E(f"    v_fma_f32 v{dst}, v32, v30, v31")
        bf16r(dst, dst)
    E("    v_lshlrev_b32 v1, 3, v0")
    E("    ds_write_b64 v1, v[12:13]")
    E("    ds_write_b64 v1, v[14:15] offset:2048")
    E("    s_waitcnt lgkmcnt(0)")
    E("    s_barrier")
    E("    v_and_b32 v1, 3, v0")
    E("    v_lshrrev_b32 v2, 2, v0")
    E("    v_lshlrev_b32 v3, 2, v2")
    for i in range(9):
        E(f"    ds_read_b32 v{4+i}, v3 offset:{i*256}")
    E("    s_cmp_ge_u32 s2, 128")
    E("    s_cbranch_scc1 K1_gateup")

    def gemv(nmat, stride, srd0):
        E(f"    s_mov_b32 s47, {stride}")
        E("    v_mul_lo_u32 v13, v2, s47")
        E("    v_lshlrev_b32 v14, 4, v1")
        E("    v_add_u32 v13, v13, v14")
        base = 16
        for m in range(nmat):
            E("    s_mov_b32 s47, s46")
            for i in range(9):
                E(f"    buffer_load_dwordx4 v[{base+m*36+i*4}:{base+m*36+i*4+3}], v13, s[{srd0+4*m}:{srd0+4*m+3}], s47 offen")
                if i < 8:
                    E(f"    s_add_u32 s47, s47, {64*stride}")
        accb = base + nmat*36
        for m in range(nmat):
            for j in range(8):
                E(f"    v_mov_b32 v{accb+m*8+j}, 0")
        E("    s_waitcnt lgkmcnt(0)")
        for m in range(nmat):
            for i in range(9):
                rem = (nmat-1-m)*9 + (8-i)
                E(f"    s_waitcnt vmcnt({rem})")
                for d in range(4):
                    w = base+m*36+i*4+d
                    E(f"    v_lshlrev_b32 v14, 16, v{w}")
                    E(f"    v_and_b32 v15, 0xffff0000, v{w}")
                    E(f"    v_fmac_f32 v{accb+m*8+2*d}, v14, v{4+i}")
                    E(f"    v_fmac_f32 v{accb+m*8+2*d+1}, v15, v{4+i}")
        E("    v_lshlrev_b32 v14, 7, v2")
        E("    v_lshlrev_b32 v15, 5, v1")
        E("    v_add_u32 v14, v14, v15")
        for m in range(nmat):
            E(f"    ds_write_b128 v14, v[{accb+m*8}:{accb+m*8+3}] offset:{12288+m*8192}")
            E(f"    ds_write_b128 v14, v[{accb+m*8+4}:{accb+m*8+7}] offset:{12288+m*8192+16}")
        E("    s_waitcnt lgkmcnt(0)")
        E("    s_barrier")
        E("    v_and_b32 v14, 31, v0")
        E("    v_lshlrev_b32 v14, 2, v14")
        E("    v_lshrrev_b32 v15, 5, v0")
        E("    v_lshlrev_b32 v16, 10, v15")
        E("    v_add_u32 v16, v16, v14")
        for m in range(nmat):
            for k in range(8):
                E(f"    ds_read_b32 v{20+m*8+k}, v16 offset:{12288+m*8192+k*128}")
        E("    s_waitcnt lgkmcnt(0)")
        for m in range(nmat):
            for k in range(1, 8):
                E(f"    v_add_f32 v{20+m*8}, v{20+m*8}, v{20+m*8+k}")
        E("    v_lshlrev_b32 v16, 7, v15")
        E("    v_add_u32 v16, v16, v14")
        E("    s_barrier")
        for m in range(nmat):
            E(f"    ds_write_b32 v16, v{20+m*8} offset:{12288+m*8192}")
        E("    s_waitcnt lgkmcnt(0)")
        E("    s_barrier")
        for m in range(nmat):
            for k in range(8):
                E(f"    ds_read_b32 v{20+m*8+k}, v14 offset:{12288+m*8192+k*128}")
        E("    s_waitcnt lgkmcnt(0)")
        for m in range(nmat):
            for k in range(1, 8):
                E(f"    v_add_f32 v{20+m*8}, v{20+m*8}, v{20+m*8+k}")

    srd(48, 22, 576*4096*2)
    srd(52, 38, WS_SIZE)
    E("    s_lshl_b32 s46, s2, 6")
    gemv(1, 8192, 48)
    bf16r(20, 20)
    E("    v_lshrrev_b32 v21, 16, v20")
    E("    v_lshlrev_b32 v22, 1, v0")
    E("    v_add_u32 v22, s46, v22")
    E("    v_cmp_gt_u32 vcc, 32, v0")
    E("    s_and_saveexec_b64 s[44:45], vcc")
    E("    s_cbranch_execz K1_exit")
    E(f"    buffer_store_short v21, v22, s[52:55], 0 offen offset:{WS_Q}")
    E("    s_branch K1_exit")

    E("K1_gateup:")
    srd(48, 28, 576*4608*2)
    srd(52, 30, 576*4608*2)
    srd(56, 38, WS_SIZE)
    E("    s_sub_u32 s46, s2, 128")
    E("    s_lshl_b32 s46, s46, 6")
    gemv(2, 9216, 48)
    bf16r(20, 20)
    bf16r(28, 28)
    k0 = 0.7978845608028654
    k1 = 0.044715
    E("    v_mul_f32 v21, v20, v20")
    E("    v_mul_f32 v21, v21, v20")
    E(f"    v_mov_b32 v22, {f32hex(k1)}")
    E("    v_fma_f32 v21, v21, v22, v20")
    E(f"    v_mul_f32 v21, {f32hex(k0*2*1.4426950408889634)}, v21")
    E("    v_exp_f32 v21, v21")
    E("    s_nop 1")
    E("    v_add_f32 v21, 1.0, v21")
    E("    v_rcp_f32 v21, v21")
    E("    s_nop 1")
    E("    v_fma_f32 v21, v21, -2.0, 2.0")
    E("    v_mul_f32 v21, v21, v20")
    E("    v_mul_f32 v21, 0.5, v21")
    bf16r(21, 21)
    E("    v_mul_f32 v21, v21, v28")
    bf16r(21, 21)
    E("    v_lshlrev_b32 v22, 2, v0")
    E("    s_lshl_b32 s46, s46, 1")
    E(f"    s_add_u32 s46, s46, {WS_H}")
    E("    v_add_u32 v22, s46, v22")
    E("    v_cmp_gt_u32 vcc, 32, v0")
    E("    s_and_saveexec_b64 s[44:45], vcc")
    E("    s_cbranch_execz K1_exit")
    E("    buffer_store_dword v21, v22, s[56:59], 0 offen")
    E("K1_exit:")
    E("    s_endpgm")
    kd(name, 112)

def gen_k2():
    name = "k2_attn_kernel"
    NWG = 16 * NSPLIT
    kernel_begin(name)
    E(f"    s_cmp_ge_u32 s2, {NWG}")
    E("    s_cbranch_scc1 K2_exit")
    load_ptrs()
    KB, VB, SA, SB, PA, PB, AA, AB = 16, 48, 80, 88, 96, 100, 104, 112
    MA, MB, LA, LB = 120, 121, 122, 123
    E("    v_and_b32 v3, 63, v0")
    E("    v_lshlrev_b32 v1, 4, v3")
    E("    v_lshrrev_b32 v12, 6, v0")
    E("    v_lshlrev_b32 v12, 16, v12")
    E("    v_add_u32 v1, v1, v12")
    E("    v_add_u32 v2, 0x1000, v1")
    E("    v_and_b32 v3, 15, v0")
    E("    v_lshlrev_b32 v3, 4, v3")
    E("    s_lshr_b32 s57, s2, 6")
    E("    s_and_b32 s58, s2, 63")
    E("    s_lshl_b32 s54, s2, 18")
    E("    s_mov_b32 s55, s54")
    E("    s_mov_b32 s52, 0x05040100")
    E("    s_mov_b32 s53, 0x07060302")
    E(f"    s_mov_b32 s56, {f32hex(C_SCALE)}")
    E("    s_waitcnt lgkmcnt(0)")
    srd(40, 18, 1 << 28)
    srd(44, 20, 1 << 28)
    srd(48, 38, WS_SIZE)
    E("    s_lshl_b32 s59, s57, 9")
    E("    buffer_load_dwordx4 v[4:7], v3, s[48:51], s59 offen")
    E("    buffer_load_dwordx4 v[8:11], v3, s[48:51], s59 offen offset:256")
    def issue(buf, srdn, sreg):
        for i in range(8):
            va = 1 if i < 4 else 2
            E(f"    buffer_load_dwordx4 v[{buf+4*i}:{buf+4*i+3}], v{va}, s[{srdn}:{srdn+3}], s{sreg} offen offset:{(i%4)*1024} nt")
    issue(KB, 40, 54)
    issue(VB, 44, 55)
    for r in range(AA, AA+16):
        E(f"    v_mov_b32 v{r}, 0")
    E(f"    v_mov_b32 v{MA}, 0xff800000")
    E(f"    v_mov_b32 v{MB}, 0xff800000")
    E(f"    v_mov_b32 v{LA}, 0")
    E(f"    v_mov_b32 v{LB}, 0")
    NB = 8
    for b in range(NB):
        last = (b == NB-1)
        E(f"    ; ---- block {b}")
        E("    s_waitcnt vmcnt(8)")
        for i in range(8):
            for (S, Q) in ((SA, 4), (SB, 8)):
                E(f"    v_dot2_f32_bf16 v{S+i}, v{KB+4*i}, v{Q}, 0")
        for d in range(1, 4):
            for i in range(8):
                for (S, Q) in ((SA, 4), (SB, 8)):
                    E(f"    v_dot2c_f32_bf16 v{S+i}, v{KB+4*i+d}, v{Q+d}")
        if not last:
            E("    s_add_u32 s54, s54, 8192")
            issue(KB, 40, 54)
        else:
            E("    s_nop 2")
        regs = [SA+i for i in range(8)] + [SB+i for i in range(8)]
        row_reduce(regs)
        for (S, M, L, A, P) in ((SA, MA, LA, AA, PA), (SB, MB, LB, AB, PB)):
            E(f"    v_max3_f32 v12, v{S}, v{S+1}, v{S+2}")
            E(f"    v_max3_f32 v12, v12, v{S+3}, v{S+4}")
            E(f"    v_max3_f32 v12, v12, v{S+5}, v{S+6}")
            E(f"    v_max3_f32 v12, v12, v{S+7}, v{M}")
            E(f"    v_sub_f32 v13, v{M}, v12")
            E(f"    v_mul_f32 v13, s56, v13")
            E(f"    v_exp_f32 v13, v13")
            E(f"    v_mul_f32 v14, s56, v12")
            E(f"    v_mov_b32 v{M}, v12")
            for i in range(8):
                E(f"    v_fma_f32 v{S+i}, v{S+i}, s56, -v14")
            for i in range(8):
                E(f"    v_exp_f32 v{S+i}, v{S+i}")
            E(f"    v_mul_f32 v{L}, v{L}, v13")
            for k in range(8):
                E(f"    v_mul_f32 v{A+k}, v{A+k}, v13")
            for i in range(8):
                E(f"    v_add_f32 v{L}, v{L}, v{S+i}")
            for j in range(4):
                E(f"    v_cvt_pk_bf16_f32 v{P+j}, v{S+2*j}, v{S+2*j+1}")
        E(f"    s_waitcnt vmcnt({0 if last else 8})")
        for j in range(4):
            for d in range(4):
                va, vb = VB+8*j+d, VB+8*j+4+d
                lo, hi = (12, 13) if d % 2 == 0 else (14, 15)
                E(f"    v_perm_b32 v{lo}, v{vb}, v{va}, s52")
                E(f"    v_perm_b32 v{hi}, v{vb}, v{va}, s53")
                E(f"    v_dot2c_f32_bf16 v{AA+2*d}, v{lo}, v{PA+j}")
                E(f"    v_dot2c_f32_bf16 v{AA+2*d+1}, v{hi}, v{PA+j}")
                E(f"    v_dot2c_f32_bf16 v{AB+2*d}, v{lo}, v{PB+j}")
                E(f"    v_dot2c_f32_bf16 v{AB+2*d+1}, v{hi}, v{PB+j}")
        if not last:
            E("    s_add_u32 s55, s55, 8192")
            issue(VB, 44, 55)
    E("    s_nop 3")
    E("    v_lshrrev_b32 v12, 4, v0")
    E("    v_lshlrev_b32 v13, 10, v12")
    E("    v_and_b32 v14, 15, v0")
    E("    v_lshlrev_b32 v14, 5, v14")
    E("    v_add_u32 v13, v13, v14")
    E(f"    ds_write_b128 v13, v[{AA}:{AA+3}]")
    E(f"    ds_write_b128 v13, v[{AA+4}:{AA+7}] offset:16")
    E(f"    ds_write_b128 v13, v[{AB}:{AB+3}] offset:512")
    E(f"    ds_write_b128 v13, v[{AB+4}:{AB+7}] offset:528")
    E("    v_lshlrev_b32 v14, 4, v12")
    E(f"    ds_write_b128 v14, v[{MA}:{MA+3}] offset:16384")
    E("    s_waitcnt lgkmcnt(0)")
    E("    s_barrier")
    E("    v_lshrrev_b32 v12, 7, v0")
    E("    v_lshlrev_b32 v13, 2, v12")
    for j in range(16):
        E(f"    ds_read2_b32 v[{16+2*j}:{17+2*j}], v13 offset0:{(16384+j*16)//4 - 0} offset1:{(16384+j*16)//4 + 2}") if False else None
    E("    v_add_u32 v13, 0x4000, v13")
    for j in range(16):
        E(f"    ds_read2_b32 v[{16+2*j}:{17+2*j}], v13 offset0:{j*4} offset1:{j*4+2}")
    E("    v_lshlrev_b32 v14, 2, v0")
    for j in range(16):
        E(f"    ds_read_b32 v{48+j}, v14 offset:{j*1024}")
    E("    s_waitcnt lgkmcnt(0)")
    E("    v_max3_f32 v64, v16, v18, v20")
    for j in range(3, 15, 2):
        E(f"    v_max3_f32 v64, v64, v{16+2*j}, v{16+2*j+2}")
    E("    v_max_f32 v64, v64, v46")
    E("    v_mov_b32 v65, 0")
    E("    v_mov_b32 v66, 0")
    for j in range(16):
        E(f"    v_sub_f32 v{16+2*j}, v{16+2*j}, v64")
        E(f"    v_mul_f32 v{16+2*j}, s56, v{16+2*j}")
        E(f"    v_exp_f32 v{16+2*j}, v{16+2*j}")
    E("    s_nop 0")
    for j in range(16):
        E(f"    v_fmac_f32 v65, v{16+2*j}, v{17+2*j}")
        E(f"    v_fmac_f32 v66, v{16+2*j}, v{48+j}")
    E("    s_lshl_b32 s59, s57, 16")
    E("    s_lshl_b32 s60, s58, 9")
    E("    s_add_u32 s59, s59, s60")
    E(f"    s_add_u32 s59, s59, {WS_PO}")
    E("    v_lshlrev_b32 v13, 15, v12")
    E("    v_and_b32 v14, 127, v0")
    E("    v_lshlrev_b32 v15, 2, v14")
    E("    v_add_u32 v13, v13, v15")
    E("    buffer_store_dword v66, v13, s[48:51], s59 offen")
    E("    s_lshl_b32 s59, s57, 10")
    E("    s_lshl_b32 s60, s58, 3")
    E("    s_add_u32 s59, s59, s60")
    E(f"    s_add_u32 s59, s59, {WS_ML}")
    E("    v_lshlrev_b32 v13, 9, v12")
    E("    v_cmp_eq_u32 vcc, 0, v14")
    E("    s_and_saveexec_b64 s[60:61], vcc")
    E("    s_cbranch_execz K2_exit")
    E("    buffer_store_dwordx2 v[64:65], v13, s[48:51], s59 offen")
    E("K2_exit:")
    E("    s_endpgm")
    kd(name, 128)

def gen_k3():
    name = "k3_out_kernel"
    kernel_begin(name)
    E("    s_cmp_ge_u32 s2, 272")
    E("    s_cbranch_scc1 K3_exit")
    load_ptrs()
    E("    v_lshlrev_b32 v1, 2, v0")
    E("    s_waitcnt lgkmcnt(0)")
    srd(48, 38, WS_SIZE)
    E("    s_cmp_ge_u32 s2, 128")
    E("    s_cbranch_scc1 K3_down")
    srd(40, 24, 4096*576*2)
    E("    s_lshl_b32 s46, s2, 5")
    E("    s_mul_i32 s47, s46, 1152")
    E("    v_cmp_gt_u32 vcc, 288, v0")
    E("    s_and_saveexec_b64 s[44:45], vcc")
    E("    s_cbranch_execz K3_wo_noload")
    for j in range(32):
        E(f"    buffer_load_dword v{32+j}, v1, s[40:43], s47 offen")
        if j < 31:
            E("    s_add_u32 s47, s47, 1152")
    E("K3_wo_noload:")
    E("    s_mov_b64 exec, s[44:45]")
    E("    s_lshr_b32 s57, s2, 2")
    E("    s_lshl_b32 s58, s57, 9")
    E(f"    s_add_u32 s58, s58, {WS_ML}")
    E("    v_and_b32 v2, 63, v0")
    E("    v_lshlrev_b32 v3, 3, v2")
    E("    buffer_load_dwordx2 v[4:5], v3, s[48:51], s58 offen")
    E("    s_and_b32 s59, s2, 3")
    E("    s_lshl_b32 s60, s57, 15")
    E("    s_lshl_b32 s61, s59, 7")
    E("    s_add_u32 s60, s60, s61")
    E(f"    s_add_u32 s60, s60, {WS_PO}")
    E("    v_and_b32 v6, 31, v0")
    E("    v_lshlrev_b32 v6, 2, v6")
    E("    v_lshrrev_b32 v7, 5, v0")
    E("    v_lshlrev_b32 v8, 12, v7")
    E("    v_add_u32 v6, v6, v8")
    E("    v_cmp_gt_u32 vcc, 256, v0")
    E("    s_and_saveexec_b64 s[44:45], vcc")
    E("    s_cbranch_execz K3_sa_noload")
    for k in range(8):
        E(f"    buffer_load_dword v{64+k}, v6, s[48:51], s60 offen offset:{k*512}")
    E("K3_sa_noload:")
    E("    s_mov_b64 exec, s[44:45]")
    E("    s_waitcnt vmcnt(8)")
    E("    s_waitcnt vmcnt(0)")
    E("    v_mov_b32 v9, v4")
    E("    s_nop 1")
    row_reduce([9], "max")
    E("    s_nop 1")
    E("    v_readlane_b32 s62, v9, 0")
    E("    v_readlane_b32 s63, v9, 16")
    E("    v_readlane_b32 s64, v9, 32")
    E("    v_readlane_b32 s65, v9, 48")
    E("    s_nop 2")
    E("    v_mov_b32 v9, s62")
    E("    v_max_f32 v9, s63, v9")
    E("    v_max_f32 v9, s64, v9")
    E("    v_max_f32 v9, s65, v9")
    E("    v_sub_f32 v10, v4, v9")
    E(f"    v_mul_f32 v10, {f32hex(C_SCALE)}, v10")
    E("    v_exp_f32 v10, v10")
    E("    s_nop 1")
    E("    v_mul_f32 v11, v10, v5")
    E("    s_nop 1")
    row_reduce([11], "add")
    E("    s_nop 1")
    E("    v_readlane_b32 s62, v11, 0")
    E("    v_readlane_b32 s63, v11, 16")
    E("    v_readlane_b32 s64, v11, 32")
    E("    v_readlane_b32 s65, v11, 48")
    E("    s_nop 2")
    E("    v_mov_b32 v11, s62")
    E("    v_add_f32 v11, s63, v11")
    E("    v_add_f32 v11, s64, v11")
    E("    v_add_f32 v11, s65, v11")
    E("    v_rcp_f32 v12, v11")
    E("    s_nop 1")
    E("    v_mul_f32 v13, v10, v12")
    E("    v_fma_f32 v14, -v11, v13, v10")
    E("    v_fma_f32 v13, v14, v12, v13")
    E("    v_lshlrev_b32 v14, 2, v2")
    E("    ds_write_b32 v14, v13")
    E("    s_waitcnt lgkmcnt(0)")
    E("    s_barrier")
    E("    v_lshlrev_b32 v14, 5, v7")
    E("    ds_read_b128 v[72:75], v14")
    E("    ds_read_b128 v[76:79], v14 offset:16")
    E("    s_waitcnt lgkmcnt(0)")
    E("    v_mul_f32 v15, v64, v72")
    for k in range(1, 8):
        E(f"    v_fmac_f32 v15, v{64+k}, v{72+k}")
    E("    v_and_b32 v16, 31, v0")
    E("    v_lshlrev_b32 v16, 2, v16")
    E("    v_lshlrev_b32 v17, 7, v7")
    E("    v_add_u32 v17, v17, v16")
    E("    ds_write_b32 v17, v15 offset:256")
    E("    s_waitcnt lgkmcnt(0)")
    E("    s_barrier")
    for k in range(8):
        E(f"    ds_read_b32 v{64+k}, v16 offset:{256+k*128}")
    E("    s_waitcnt lgkmcnt(0)")
    for k in range(1, 8):
        E(f"    v_add_f32 v64, v64, v{64+k}")
    bf16r(64, 64)
    E("    s_barrier")
    E("    ds_write_b32 v16, v64 offset:2048")
    E("    s_waitcnt lgkmcnt(0)")
    E("    s_barrier")
    E("    v_mov_b32 v16, 0")
    for k in range(8):
        E(f"    ds_read_b128 v[{64+4*k}:{67+4*k}], v16 offset:{2048+16*k}")
    E("    s_waitcnt lgkmcnt(0)")
    E("    v_mov_b32 v20, 0")
    E("    v_mov_b32 v21, 0")
    for j in range(32):
        E(f"    v_lshlrev_b32 v22, 16, v{32+j}")
        E(f"    v_and_b32 v23, 0xffff0000, v{32+j}")
        E(f"    v_fmac_f32 v20, v22, v{64+j}")
        E(f"    v_fmac_f32 v21, v23, v{64+j}")
    E("    s_mul_i32 s46, s2, 2304")
    E(f"    s_add_u32 s46, s46, {WS_PSUM}")
    E("    v_lshlrev_b32 v22, 3, v0")
    E("    v_cmp_gt_u32 vcc, 288, v0")
    E("    s_and_saveexec_b64 s[44:45], vcc")
    E("    s_cbranch_execz K3_exit")
    E("    buffer_store_dwordx2 v[20:21], v22, s[48:51], s46 offen")
    E("    s_branch K3_exit")
    E("K3_down:")
    srd(40, 32, 4608*576*2)
    E("    s_sub_u32 s57, s2, 128")
    E("    s_lshl_b32 s46, s57, 5")
    E("    s_mul_i32 s47, s46, 1152")
    E("    s_lshl_b32 s58, s46, 2")
    E(f"    s_add_u32 s58, s58, {WS_H}")
    E("    s_add_u32 s62, s38, s58")
    E("    s_addc_u32 s63, s39, 0")
    E("    s_load_dwordx16 s[64:79], s[62:63], 0")
    E("    s_load_dwordx16 s[80:95], s[62:63], 64")
    E("    v_cmp_gt_u32 vcc, 288, v0")
    E("    s_and_saveexec_b64 s[44:45], vcc")
    E("    s_cbranch_execz K3_exit")
    for j in range(32):
        E(f"    buffer_load_dword v{32+j}, v1, s[40:43], s47 offen")
        if j < 31:
            E("    s_add_u32 s47, s47, 1152")
    E("    v_mov_b32 v20, 0")
    E("    v_mov_b32 v21, 0")
    E("    s_waitcnt vmcnt(0) lgkmcnt(0)")
    for j in range(32):
        E(f"    v_lshlrev_b32 v22, 16, v{32+j}")
        E(f"    v_and_b32 v23, 0xffff0000, v{32+j}")
        E(f"    v_fmac_f32 v20, s{64+j}, v22")
        E(f"    v_fmac_f32 v21, s{64+j}, v23")
    E("    s_mul_i32 s46, s57, 2304")
    E(f"    s_add_u32 s46, s46, {WS_DSUM}")
    E("    v_lshlrev_b32 v22, 3, v0")
    E("    buffer_store_dwordx2 v[20:21], v22, s[48:51], s46 offen")
    E("K3_exit:")
    E("    s_endpgm")
    kd(name, 96)

def gen_k4():
    name = "k4_final_kernel"
    kernel_begin(name)
    E("    s_cmp_ge_u32 s2, 9")
    E("    s_cbranch_scc1 K4_exit")
    load_ptrs()
    E("    v_and_b32 v1, 63, v0")
    E("    v_lshlrev_b32 v1, 2, v1")
    E("    s_lshl_b32 s46, s2, 8")
    E("    v_add_u32 v1, s46, v1")
    E("    v_lshrrev_b32 v2, 6, v0")
    E("    s_mov_b32 s47, 2304")
    E("    v_mul_lo_u32 v3, v2, s47")
    E("    v_lshlrev_b32 v4, 5, v3")
    E("    v_add_u32 v4, v4, v1")
    E("    v_mul_u32_u24 v5, 36, v3")
    E("    v_add_u32 v5, v5, v1")
    E("    s_waitcnt lgkmcnt(0)")
    srd(48, 38, WS_SIZE)
    srd(40, 16, 1152)
    srd(52, 34, 1152)
    E(f"    s_mov_b32 s47, {WS_PSUM}")
    for i in range(32):
        E(f"    buffer_load_dword v{16+i}, v4, s[48:51], s47 offen")
        if i < 31:
            E("    s_add_u32 s47, s47, 2304")
    E(f"    s_mov_b32 s47, {WS_DSUM}")
    for i in range(36):
        E(f"    buffer_load_dword v{48+i}, v5, s[48:51], s47 offen")
        if i < 35:
            E("    s_add_u32 s47, s47, 2304")
    E("    v_lshrrev_b32 v6, 1, v1")
    E("    buffer_load_ushort v7, v6, s[40:43], 0 offen")
    E("    s_waitcnt vmcnt(1)")
    sum16(16); sum16(32)
    E("    v_add_f32 v16, v16, v32")
    sum16(48); sum16(64)
    E("    v_add_f32 v48, v48, v64")
    for i in range(80, 84):
        E(f"    v_add_f32 v48, v48, v{i}")
    E("    v_lshlrev_b32 v8, 2, v0")
    E("    ds_write_b32 v8, v16")
    E("    ds_write_b32 v8, v48 offset:1024")
    E("    s_waitcnt lgkmcnt(0)")
    E("    s_barrier")
    E("    v_and_b32 v8, 63, v0")
    E("    v_lshlrev_b32 v8, 2, v8")
    for k in range(4):
        E(f"    ds_read_b32 v{16+k}, v8 offset:{k*256}")
        E(f"    ds_read_b32 v{20+k}, v8 offset:{1024+k*256}")
    E("    s_waitcnt lgkmcnt(0) vmcnt(0)")
    E("    v_add_f32 v16, v16, v17")
    E("    v_add_f32 v18, v18, v19")
    E("    v_add_f32 v16, v16, v18")
    E("    v_add_f32 v20, v20, v21")
    E("    v_add_f32 v22, v22, v23")
    E("    v_add_f32 v20, v20, v22")
    bf16r(16, 16)
    bf16r(20, 20)
    E(f"    v_mul_f32 v21, {f32hex(-1.4426950408889634)}, v20")
    E("    v_exp_f32 v21, v21")
    E("    s_nop 1")
    E("    v_add_f32 v21, 1.0, v21")
    E("    v_rcp_f32 v22, v21")
    E("    s_nop 1")
    E("    v_mul_f32 v23, v20, v22")
    E("    v_fma_f32 v24, -v21, v23, v20")
    E("    v_fma_f32 v23, v24, v22, v23")
    bf16r(23, 23)
    E("    v_mul_f32 v23, v16, v23")
    bf16r(23, 23)
    E("    v_lshlrev_b32 v7, 16, v7")
    E("    v_add_f32 v23, v7, v23")
    E("    v_cvt_pk_bf16_f32 v23, v23, v23")
    E("    v_cmp_gt_u32 vcc, 64, v0")
    E("    s_and_saveexec_b64 s[44:45], vcc")
    E("    s_cbranch_execz K4_exit")
    E("    buffer_store_short v23, v6, s[52:55], 0 offen")
    E("K4_exit:")
    E("    s_endpgm")
    kd(name, 88)

E(HEADER.rstrip("\n"))
E("; @launch kernel=k1_proj_kernel grid=(272,1,1) block=(256,1,1) lds=32768")
E(f"; @launch kernel=k2_attn_kernel grid=({16*NSPLIT},1,1) block=(256,1,1) lds=16640")
E("; @launch kernel=k3_out_kernel grid=(272,1,1) block=(320,1,1) lds=4096")
E("; @launch kernel=k4_final_kernel grid=(9,1,1) block=(256,1,1) lds=2048")
E('.amdgcn_target "amdgcn-amd-amdhsa--gfx950"')
E(".text")
gen_k1(); gen_k2(); gen_k3(); gen_k4()
emit_kds()
open('recurrent_scan__gqa_block_cached__glu_gated_geglu__decode.s', 'w').write("\n".join(out) + "\n")
print("lines:", len(out))
```

```python
import struct, sys

def f32hex(x):
    return "0x%08x" % struct.unpack("<I", struct.pack("<f", x))[0]

REF = open('recurrent_scan__gqa_block_cached__glu_gated_geglu__decode.s.ref').read()
HEADER = REF.split('; Override launch')[0]

WS_Q    = 0
WS_H    = 8192
WS_ML   = 32768
WS_PO   = 65536
WS_PSUM = 2097152
WS_DSUM = 3145728
WS_SIZE = 1 << 30

NSPLIT = 64
C_SCALE = (128 ** -0.5) * 1.4426950408889634

out = []
def E(s=""):
    out.append(s)

def load_ptrs():
    E("    s_load_dwordx16 s[16:31], s[0:1], 0")
    E("    s_load_dwordx8 s[32:39], s[0:1], 64")

def srd(dst, src, nbytes):
    E(f"    s_mov_b32 s{dst}, s{src}")
    E(f"    s_and_b32 s{dst+1}, s{src+1}, 0xffff")
    E(f"    s_mov_b32 s{dst+2}, {nbytes}")
    E(f"    s_mov_b32 s{dst+3}, 0x00020000")

def bf16r(dst, src):
    E(f"    v_cvt_pk_bf16_f32 v{dst}, v{src}, v{src}")
    E(f"    v_and_b32 v{dst}, 0xffff0000, v{dst}")

def kernel_begin(name):
    E(".p2align 8")
    E(f".globl {name}")
    E(f".type {name},@function")
    E(f"{name}:")

kds = []
def kd(name, vgpr, sgpr=102):
    kds.append((name, vgpr, sgpr))

def emit_kds():
    E(".section .rodata,\"a\"")
    for (name, vgpr, sgpr) in kds:
        E(".p2align 6")
        E(f".amdhsa_kernel {name}")
        E(f"  .amdhsa_next_free_vgpr {vgpr}")
        E(f"  .amdhsa_next_free_sgpr {sgpr}")
        E(f"  .amdhsa_accum_offset {((vgpr+3)//4)*4}")
        E("  .amdhsa_group_segment_fixed_size 0")
        E("  .amdhsa_kernarg_size 96")
        E("  .amdhsa_user_sgpr_count 2")
        E("  .amdhsa_user_sgpr_kernarg_segment_ptr 1")
        E("  .amdhsa_system_sgpr_workgroup_id_x 1")
        E(".end_amdhsa_kernel")

def row_reduce(regs, op="add"):
    ins = {"add": "v_add_f32_dpp", "max": "v_max_f32_dpp"}[op]
    for step in (8, 4, 2, 1):
        for r in regs:
            E(f"    {ins} v{r}, v{r}, v{r} row_ror:{step} row_mask:0xf bank_mask:0xf")
        if len(regs) < 3:
            E("    s_nop 1")

def sum16(base):
    for st in (1, 2, 4, 8):
        for k in range(0, 16, 2*st):
            E(f"    v_add_f32 v{base+k}, v{base+k}, v{base+k+st}")

def gen_k1():
    name = "k1_proj_kernel"
    kernel_begin(name)
    E("    s_cmp_ge_u32 s2, 272")
    E("    s_cbranch_scc1 K1_exit")
    load_ptrs()
    E("    v_and_b32 v1, 3, v0")
    E("    v_lshrrev_b32 v2, 2, v0")
    E("    v_and_b32 v3, 63, v0")
    E("    v_lshlrev_b32 v3, 2, v3")
    E("    s_waitcnt lgkmcnt(0)")
    srd(40, 16, 1152)
    srd(56, 38, WS_SIZE)
    for k in range(5):
        E(f"    buffer_load_dword v{4+k}, v3, s[40:43], 0 offen offset:{k*256}")
    E("    s_cmp_ge_u32 s2, 128")
    E("    s_cbranch_scc1 K1_gu_setup")
    srd(48, 22, 576*4096*2)
    E("    s_lshl_b32 s46, s2, 6")
    E("    s_mov_b32 s47, 8192")
    E("    s_branch K1_issue")
    E("K1_gu_setup:")
    srd(48, 28, 576*4608*2)
    srd(52, 30, 576*4608*2)
    E("    s_sub_u32 s46, s2, 128")
    E("    s_lshl_b32 s46, s46, 6")
    E("    s_mov_b32 s47, 9216")
    E("K1_issue:")
    E("    v_mul_lo_u32 v13, v2, s47")
    E("    v_lshlrev_b32 v14, 4, v1")
    E("    v_add_u32 v13, v13, v14")
    E("    s_lshl_b32 s60, s47, 6")
    WB = 16
    E("    s_mov_b32 s47, s46")
    for i in range(9):
        E(f"    buffer_load_dwordx4 v[{WB+i*4}:{WB+i*4+3}], v13, s[48:51], s47 offen")
        if i < 8:
            E("    s_add_u32 s47, s47, s60")
    E("    s_cmp_ge_u32 s2, 128")
    E("    s_cbranch_scc0 K1_ln")
    E("    s_mov_b32 s47, s46")
    for i in range(9):
        E(f"    buffer_load_dwordx4 v[{WB+36+i*4}:{WB+36+i*4+3}], v13, s[52:55], s47 offen")
        if i < 8:
            E("    s_add_u32 s47, s47, s60")
    E("    s_waitcnt vmcnt(18)")
    E("    s_branch K1_ln2")
    E("K1_ln:")
    E("    s_waitcnt vmcnt(9)")
    E("K1_ln2:")
    for k in range(5):
        E(f"    v_lshlrev_b32 v{90+2*k}, 16, v{4+k}")
        E(f"    v_and_b32 v{91+2*k}, 0xffff0000, v{4+k}")
    E("    v_cmp_gt_u32 vcc, 32, v0")
    E("    v_and_b32 v9, 63, v0")
    E("    v_cmp_gt_u32 vcc, 32, v9")
    E("    s_mov_b64 s[44:45], vcc")
    E("    v_add_f32 v10, v90, v91")
    for k in range(92, 100):
        E(f"    v_add_f32 v10, v10, v{k}")
    def wave_allsum(r, t):
        E("    s_nop 1")
        row_reduce([r])
        E("    s_nop 1")
        for q in range(4):
            E(f"    v_readlane_b32 s{62+q}, v{r}, {16*q}")
        E("    s_nop 2")
        E(f"    v_mov_b32 v{r}, s62")
        for q in range(1, 4):
            E(f"    v_add_f32 v{r}, s{62+q}, v{r}")
    wave_allsum(10, 11)
    E(f"    v_mul_f32 v100, {f32hex(1.0/576)}, v10")
    E("    v_mov_b32 v10, 0")
    for k in range(90, 98):
        E(f"    v_sub_f32 v11, v{k}, v100")
        E("    v_fmac_f32 v10, v11, v11")
    E("    v_sub_f32 v11, v98, v100")
    E("    v_sub_f32 v12, v99, v100")
    E("    v_mul_f32 v11, v11, v11")
    E("    v_fmac_f32 v11, v12, v12")
    E("    v_cndmask_b32 v11, 0, v11, s[44:45]")
    E("    v_add_f32 v10, v10, v11")
    wave_allsum(10, 11)
    E(f"    v_mul_f32 v101, {f32hex(1.0/576)}, v10")
    bf16r(100, 100)
    bf16r(101, 101)
    E(f"    v_add_f32 v101, {f32hex(1e-5)}, v101")
    bf16r(101, 101)
    E("    v_sqrt_f32 v101, v101")
    E("    s_nop 1")
    bf16r(101, 101)
    E("    v_rcp_f32 v102, v101")
    E("    s_nop 1")
    for k in range(90, 100):
        E(f"    v_sub_f32 v{k}, v{k}, v100")
        bf16r(k, k)
        E(f"    v_mul_f32 v10, v{k}, v102")
        E(f"    v_fma_f32 v11, -v101, v10, v{k}")
        E(f"    v_fma_f32 v{k}, v11, v102, v10")
        bf16r(k, k)
    E("    v_lshrrev_b32 v9, 6, v0")
    E("    v_mul_u32_u24 v9, 2560, v9")
    E("    v_lshlrev_b32 v10, 1, v3")
    E("    v_add_u32 v10, v10, v9")
    for k in range(5):
        E(f"    ds_write_b64 v10, v[{90+2*k}:{91+2*k}] offset:{k*512}")
    E("    v_lshlrev_b32 v14, 2, v2")
    E("    v_add_u32 v14, v14, v9")
    E("    s_waitcnt lgkmcnt(0)")
    for i in range(9):
        E(f"    ds_read_b32 v{4+i}, v14 offset:{i*256}")
    E("    s_cmp_ge_u32 s2, 128")
    E("    s_cbranch_scc1 K1_gateup")

    def gemv(nmat):
        accb = WB + nmat*36
        for m in range(nmat):
            for j in range(8):
                E(f"    v_mov_b32 v{accb+m*8+j}, 0")
        E("    s_waitcnt lgkmcnt(0)")
        for m in range(nmat):
            for i in range(9):
                rem = (nmat-1-m)*9 + (8-i)
                E(f"    s_waitcnt vmcnt({rem})")
                for d in range(4):
                    w = WB+m*36+i*4+d
                    E(f"    v_lshlrev_b32 v14, 16, v{w}")
                    E(f"    v_and_b32 v15, 0xffff0000, v{w}")
                    E(f"    v_fmac_f32 v{accb+m*8+2*d}, v14, v{4+i}")
                    E(f"    v_fmac_f32 v{accb+m*8+2*d+1}, v15, v{4+i}")
        regs = [accb+m*8+j for m in range(nmat) for j in range(8)]
        for step in (4, 8):
            for r in regs:
                E(f"    v_add_f32_dpp v{r}, v{r}, v{r} row_ror:{step} row_mask:0xf bank_mask:0xf")
        E("    v_lshrrev_b32 v14, 4, v0")
        E("    v_lshlrev_b32 v14, 7, v14")
        E("    v_lshlrev_b32 v15, 5, v1")
        E("    v_add_u32 v14, v14, v15")
        for m in range(nmat):
            E(f"    ds_write_b128 v14, v[{accb+m*8}:{accb+m*8+3}] offset:{12288+m*2048}")
            E(f"    ds_write_b128 v14, v[{accb+m*8+4}:{accb+m*8+7}] offset:{12288+m*2048+16}")
        E("    s_waitcnt lgkmcnt(0)")
        E("    s_barrier")
        E("    v_and_b32 v14, 31, v0")
        E("    v_lshlrev_b32 v14, 2, v14")
        for m in range(nmat):
            for k in range(16):
                E(f"    ds_read_b32 v{20+m*16+k}, v14 offset:{12288+m*2048+k*128}")
        E("    s_waitcnt lgkmcnt(0)")
        for m in range(nmat):
            sum16(20+m*16)

    gemv(1)
    bf16r(20, 20)
    E("    v_lshrrev_b32 v21, 16, v20")
    E("    v_lshlrev_b32 v22, 1, v0")
    E("    v_add_u32 v22, s46, v22")
    E("    v_cmp_gt_u32 vcc, 32, v0")
    E("    s_and_saveexec_b64 s[44:45], vcc")
    E("    s_cbranch_execz K1_exit")
    E(f"    buffer_store_short v21, v22, s[56:59], 0 offen offset:{WS_Q}")
    E("    s_branch K1_exit")

    E("K1_gateup:")
    gemv(2)
    bf16r(20, 20)
    bf16r(36, 36)
    k0 = 0.7978845608028654
    k1 = 0.044715
    E("    v_mul_f32 v21, v20, v20")
    E("    v_mul_f32 v21, v21, v20")
    E(f"    v_mov_b32 v22, {f32hex(k1)}")
    E("    v_fma_f32 v21, v21, v22, v20")
    E(f"    v_mul_f32 v21, {f32hex(k0*2*1.4426950408889634)}, v21")
    E("    v_exp_f32 v21, v21")
    E("    s_nop 1")
    E("    v_add_f32 v21, 1.0, v21")
    E("    v_rcp_f32 v21, v21")
    E("    s_nop 1")
    E("    v_fma_f32 v21, v21, -2.0, 2.0")
    E("    v_mul_f32 v21, v21, v20")
    E("    v_mul_f32 v21, 0.5, v21")
    bf16r(21, 21)
    E("    v_mul_f32 v21, v21, v36")
    bf16r(21, 21)
    E("    v_lshlrev_b32 v22, 2, v0")
    E("    s_lshl_b32 s46, s46, 1")
    E(f"    s_add_u32 s46, s46, {WS_H}")
    E("    v_add_u32 v22, s46, v22")
    E("    v_cmp_gt_u32 vcc, 32, v0")
    E("    s_and_saveexec_b64 s[44:45], vcc")
    E("    s_cbranch_execz K1_exit")
    E("    buffer_store_dword v21, v22, s[56:59], 0 offen")
    E("K1_exit:")
    E("    s_endpgm")
    kd(name, 104)

def gen_k2():
    name = "k2_attn_kernel"
    NWG = 16 * NSPLIT
    kernel_begin(name)
    E(f"    s_cmp_ge_u32 s2, {NWG}")
    E("    s_cbranch_scc1 K2_exit")
    load_ptrs()
    KB, VB, SA, SB, PA, PB, AA, AB = 16, 48, 80, 88, 96, 100, 104, 112
    MA, MB, LA, LB = 120, 121, 122, 123
    E("    v_and_b32 v3, 63, v0")
    E("    v_lshlrev_b32 v1, 4, v3")
    E("    v_lshrrev_b32 v12, 6, v0")
    E("    v_lshlrev_b32 v12, 16, v12")
    E("    v_add_u32 v1, v1, v12")
    E("    v_add_u32 v2, 0x1000, v1")
    E("    v_and_b32 v3, 15, v0")
    E("    v_lshlrev_b32 v3, 4, v3")
    E("    s_lshr_b32 s57, s2, 6")
    E("    s_and_b32 s58, s2, 63")
    E("    s_lshl_b32 s54, s2, 18")
    E("    s_mov_b32 s55, s54")
    E("    s_mov_b32 s52, 0x05040100")
    E("    s_mov_b32 s53, 0x07060302")
    E(f"    s_mov_b32 s56, {f32hex(C_SCALE)}")
    E("    s_waitcnt lgkmcnt(0)")
    srd(40, 18, 1 << 28)
    srd(44, 20, 1 << 28)
    srd(48, 38, WS_SIZE)
    E("    s_lshl_b32 s59, s57, 9")
    E("    buffer_load_dwordx4 v[4:7], v3, s[48:51], s59 offen")
    E("    buffer_load_dwordx4 v[8:11], v3, s[48:51], s59 offen offset:256")
    def issue(buf, srdn, sreg):
        for i in range(8):
            va = 1 if i < 4 else 2
            E(f"    buffer_load_dwordx4 v[{buf+4*i}:{buf+4*i+3}], v{va}, s[{srdn}:{srdn+3}], s{sreg} offen offset:{(i%4)*1024} nt")
    issue(KB, 40, 54)
    issue(VB, 44, 55)
    for r in range(AA, AA+16):
        E(f"    v_mov_b32 v{r}, 0")
    E(f"    v_mov_b32 v{MA}, 0xff800000")
    E(f"    v_mov_b32 v{MB}, 0xff800000")
    E(f"    v_mov_b32 v{LA}, 0")
    E(f"    v_mov_b32 v{LB}, 0")
    NB = 8
    for b in range(NB):
        last = (b == NB-1)
        E(f"    ; ---- block {b}")
        E("    s_waitcnt vmcnt(8)")
        for i in range(8):
            for (S, Q) in ((SA, 4), (SB, 8)):
                E(f"    v_dot2_f32_bf16 v{S+i}, v{KB+4*i}, v{Q}, 0")
        for d in range(1, 4):
            for i in range(8):
                for (S, Q) in ((SA, 4), (SB, 8)):
                    E(f"    v_dot2c_f32_bf16 v{S+i}, v{KB+4*i+d}, v{Q+d}")
        if not last:
            E("    s_add_u32 s54, s54, 8192")
            issue(KB, 40, 54)
        else:
            E("    s_nop 2")
        regs = [SA+i for i in range(8)] + [SB+i for i in range(8)]
        row_reduce(regs)
        for (S, M, L, A, P) in ((SA, MA, LA, AA, PA), (SB, MB, LB, AB, PB)):
            E(f"    v_max3_f32 v12, v{S}, v{S+1}, v{S+2}")
            E(f"    v_max3_f32 v12, v12, v{S+3}, v{S+4}")
            E(f"    v_max3_f32 v12, v12, v{S+5}, v{S+6}")
            E(f"    v_max3_f32 v12, v12, v{S+7}, v{M}")
            E(f"    v_sub_f32 v13, v{M}, v12")
            E(f"    v_mul_f32 v13, s56, v13")
            E(f"    v_exp_f32 v13, v13")
            E(f"    v_mul_f32 v14, s56, v12")
            E(f"    v_mov_b32 v{M}, v12")
            for i in range(8):
                E(f"    v_fma_f32 v{S+i}, v{S+i}, s56, -v14")
            for i in range(8):
                E(f"    v_exp_f32 v{S+i}, v{S+i}")
            E(f"    v_mul_f32 v{L}, v{L}, v13")
            for k in range(8):
                E(f"    v_mul_f32 v{A+k}, v{A+k}, v13")
            for i in range(8):
                E(f"    v_add_f32 v{L}, v{L}, v{S+i}")
            for j in range(4):
                E(f"    v_cvt_pk_bf16_f32 v{P+j}, v{S+2*j}, v{S+2*j+1}")
        E(f"    s_waitcnt vmcnt({0 if last else 8})")
        for j in range(4):
            for d in range(4):
                va, vb = VB+8*j+d, VB+8*j+4+d
                lo, hi = (12, 13) if d % 2 == 0 else (14, 15)
                E(f"    v_perm_b32 v{lo}, v{vb}, v{va}, s52")
                E(f"    v_perm_b32 v{hi}, v{vb}, v{va}, s53")
                E(f"    v_dot2c_f32_bf16 v{AA+2*d}, v{lo}, v{PA+j}")
                E(f"    v_dot2c_f32_bf16 v{AA+2*d+1}, v{hi}, v{PA+j}")
                E(f"    v_dot2c_f32_bf16 v{AB+2*d}, v{lo}, v{PB+j}")
                E(f"    v_dot2c_f32_bf16 v{AB+2*d+1}, v{hi}, v{PB+j}")
        if not last:
            E("    s_add_u32 s55, s55, 8192")
            issue(VB, 44, 55)
    E("    s_nop 3")
    E("    v_lshrrev_b32 v12, 4, v0")
    E("    v_lshlrev_b32 v13, 10, v12")
    E("    v_and_b32 v14, 15, v0")
    E("    v_lshlrev_b32 v14, 5, v14")
    E("    v_add_u32 v13, v13, v14")
    E(f"    ds_write_b128 v13, v[{AA}:{AA+3}]")
    E(f"    ds_write_b128 v13, v[{AA+4}:{AA+7}] offset:16")
    E(f"    ds_write_b128 v13, v[{AB}:{AB+3}] offset:512")
    E(f"    ds_write_b128 v13, v[{AB+4}:{AB+7}] offset:528")
    E("    v_lshlrev_b32 v14, 4, v12")
    E(f"    ds_write_b128 v14, v[{MA}:{MA+3}] offset:16384")
    E("    s_waitcnt lgkmcnt(0)")
    E("    s_barrier")
    E("    v_lshrrev_b32 v12, 7, v0")
    E("    v_lshlrev_b32 v13, 2, v12")
    for j in range(16):
        E(f"    ds_read2_b32 v[{16+2*j}:{17+2*j}], v13 offset0:{(16384+j*16)//4 - 0} offset1:{(16384+j*16)//4 + 2}") if False else None
    E("    v_add_u32 v13, 0x4000, v13")
    for j in range(16):
        E(f"    ds_read2_b32 v[{16+2*j}:{17+2*j}], v13 offset0:{j*4} offset1:{j*4+2}")
    E("    v_lshlrev_b32 v14, 2, v0")
    for j in range(16):
        E(f"    ds_read_b32 v{48+j}, v14 offset:{j*1024}")
    E("    s_waitcnt lgkmcnt(0)")
    E("    v_max3_f32 v64, v16, v18, v20")
    for j in range(3, 15, 2):
        E(f"    v_max3_f32 v64, v64, v{16+2*j}, v{16+2*j+2}")
    E("    v_max_f32 v64, v64, v46")
    E("    v_mov_b32 v65, 0")
    E("    v_mov_b32 v66, 0")
    for j in range(16):
        E(f"    v_sub_f32 v{16+2*j}, v{16+2*j}, v64")
        E(f"    v_mul_f32 v{16+2*j}, s56, v{16+2*j}")
        E(f"    v_exp_f32 v{16+2*j}, v{16+2*j}")
    E("    s_nop 0")
    for j in range(16):
        E(f"    v_fmac_f32 v65, v{16+2*j}, v{17+2*j}")
        E(f"    v_fmac_f32 v66, v{16+2*j}, v{48+j}")
    E("    s_lshl_b32 s59, s57, 16")
    E("    s_lshl_b32 s60, s58, 9")
    E("    s_add_u32 s59, s59, s60")
    E(f"    s_add_u32 s59, s59, {WS_PO}")
    E("    v_lshlrev_b32 v13, 15, v12")
    E("    v_and_b32 v14, 127, v0")
    E("    v_lshlrev_b32 v15, 2, v14")
    E("    v_add_u32 v13, v13, v15")
    E("    buffer_store_dword v66, v13, s[48:51], s59 offen")
    E("    s_lshl_b32 s59, s57, 10")
    E("    s_lshl_b32 s60, s58, 3")
    E("    s_add_u32 s59, s59, s60")
    E(f"    s_add_u32 s59, s59, {WS_ML}")
    E("    v_lshlrev_b32 v13, 9, v12")
    E("    v_cmp_eq_u32 vcc, 0, v14")
    E("    s_and_saveexec_b64 s[60:61], vcc")
    E("    s_cbranch_execz K2_exit")
    E("    buffer_store_dwordx2 v[64:65], v13, s[48:51], s59 offen")
    E("K2_exit:")
    E("    s_endpgm")
    kd(name, 128)

def gen_k3():
    name = "k3_out_kernel"
    kernel_begin(name)
    E("    s_cmp_ge_u32 s2, 272")
    E("    s_cbranch_scc1 K3_exit")
    load_ptrs()
    E("    v_lshlrev_b32 v1, 2, v0")
    E("    s_waitcnt lgkmcnt(0)")
    srd(48, 38, WS_SIZE)
    E("    s_cmp_ge_u32 s2, 128")
    E("    s_cbranch_scc1 K3_down")
    srd(40, 24, 4096*576*2)
    E("    s_lshl_b32 s46, s2, 5")
    E("    s_mul_i32 s47, s46, 1152")
    E("    v_cmp_gt_u32 vcc, 288, v0")
    E("    s_and_saveexec_b64 s[44:45], vcc")
    E("    s_cbranch_execz K3_wo_noload")
    for j in range(32):
        E(f"    buffer_load_dword v{32+j}, v1, s[40:43], s47 offen")
        if j < 31:
            E("    s_add_u32 s47, s47, 1152")
    E("K3_wo_noload:")
    E("    s_mov_b64 exec, s[44:45]")
    E("    s_lshr_b32 s57, s2, 2")
    E("    s_lshl_b32 s58, s57, 9")
    E(f"    s_add_u32 s58, s58, {WS_ML}")
    E("    v_and_b32 v2, 63, v0")
    E("    v_lshlrev_b32 v3, 3, v2")
    E("    buffer_load_dwordx2 v[4:5], v3, s[48:51], s58 offen")
    E("    s_and_b32 s59, s2, 3")
    E("    s_lshl_b32 s60, s57, 15")
    E("    s_lshl_b32 s61, s59, 7")
    E("    s_add_u32 s60, s60, s61")
    E(f"    s_add_u32 s60, s60, {WS_PO}")
    E("    v_and_b32 v6, 31, v0")
    E("    v_lshlrev_b32 v6, 2, v6")
    E("    v_lshrrev_b32 v7, 5, v0")
    E("    v_lshlrev_b32 v8, 12, v7")
    E("    v_add_u32 v6, v6, v8")
    E("    v_cmp_gt_u32 vcc, 256, v0")
    E("    s_and_saveexec_b64 s[44:45], vcc")
    E("    s_cbranch_execz K3_sa_noload")
    for k in range(8):
        E(f"    buffer_load_dword v{64+k}, v6, s[48:51], s60 offen offset:{k*512}")
    E("K3_sa_noload:")
    E("    s_mov_b64 exec, s[44:45]")
    E("    s_waitcnt vmcnt(8)")
    E("    s_waitcnt vmcnt(0)")
    E("    v_mov_b32 v9, v4")
    E("    s_nop 1")
    row_reduce([9], "max")
    E("    s_nop 1")
    E("    v_readlane_b32 s62, v9, 0")
    E("    v_readlane_b32 s63, v9, 16")
    E("    v_readlane_b32 s64, v9, 32")
    E("    v_readlane_b32 s65, v9, 48")
    E("    s_nop 2")
    E("    v_mov_b32 v9, s62")
    E("    v_max_f32 v9, s63, v9")
    E("    v_max_f32 v9, s64, v9")
    E("    v_max_f32 v9, s65, v9")
    E("    v_sub_f32 v10, v4, v9")
    E(f"    v_mul_f32 v10, {f32hex(C_SCALE)}, v10")
    E("    v_exp_f32 v10, v10")
    E("    s_nop 1")
    E("    v_mul_f32 v11, v10, v5")
    E("    s_nop 1")
    row_reduce([11], "add")
    E("    s_nop 1")
    E("    v_readlane_b32 s62, v11, 0")
    E("    v_readlane_b32 s63, v11, 16")
    E("    v_readlane_b32 s64, v11, 32")
    E("    v_readlane_b32 s65, v11, 48")
    E("    s_nop 2")
    E("    v_mov_b32 v11, s62")
    E("    v_add_f32 v11, s63, v11")
    E("    v_add_f32 v11, s64, v11")
    E("    v_add_f32 v11, s65, v11")
    E("    v_rcp_f32 v12, v11")
    E("    s_nop 1")
    E("    v_mul_f32 v13, v10, v12")
    E("    v_fma_f32 v14, -v11, v13, v10")
    E("    v_fma_f32 v13, v14, v12, v13")
    E("    v_lshlrev_b32 v14, 2, v2")
    E("    ds_write_b32 v14, v13")
    E("    s_waitcnt lgkmcnt(0)")
    E("    s_barrier")
    E("    v_lshlrev_b32 v14, 5, v7")
    E("    ds_read_b128 v[72:75], v14")
    E("    ds_read_b128 v[76:79], v14 offset:16")
    E("    s_waitcnt lgkmcnt(0)")
    E("    v_mul_f32 v15, v64, v72")
    for k in range(1, 8):
        E(f"    v_fmac_f32 v15, v{64+k}, v{72+k}")
    E("    v_and_b32 v16, 31, v0")
    E("    v_lshlrev_b32 v16, 2, v16")
    E("    v_lshlrev_b32 v17, 7, v7")
    E("    v_add_u32 v17, v17, v16")
    E("    ds_write_b32 v17, v15 offset:256")
    E("    s_waitcnt lgkmcnt(0)")
    E("    s_barrier")
    for k in range(8):
        E(f"    ds_read_b32 v{64+k}, v16 offset:{256+k*128}")
    E("    s_waitcnt lgkmcnt(0)")
    for k in range(1, 8):
        E(f"    v_add_f32 v64, v64, v{64+k}")
    bf16r(64, 64)
    E("    s_barrier")
    E("    ds_write_b32 v16, v64 offset:2048")
    E("    s_waitcnt lgkmcnt(0)")
    E("    s_barrier")
    E("    v_mov_b32 v16, 0")
    for k in range(8):
        E(f"    ds_read_b128 v[{64+4*k}:{67+4*k}], v16 offset:{2048+16*k}")
    E("    s_waitcnt lgkmcnt(0)")
    E("    v_mov_b32 v20, 0")
    E("    v_mov_b32 v21, 0")
    for j in range(32):
        E(f"    v_lshlrev_b32 v22, 16, v{32+j}")
        E(f"    v_and_b32 v23, 0xffff0000, v{32+j}")
        E(f"    v_fmac_f32 v20, v22, v{64+j}")
        E(f"    v_fmac_f32 v21, v23, v{64+j}")
    E("    s_mul_i32 s46, s2, 2304")
    E(f"    s_add_u32 s46, s46, {WS_PSUM}")
    E("    v_lshlrev_b32 v22, 3, v0")
    E("    v_cmp_gt_u32 vcc, 288, v0")
    E("    s_and_saveexec_b64 s[44:45], vcc")
    E("    s_cbranch_execz K3_exit")
    E("    buffer_store_dwordx2 v[20:21], v22, s[48:51], s46 offen")
    E("    s_branch K3_exit")
    E("K3_down:")
    srd(40, 32, 4608*576*2)
    E("    s_sub_u32 s57, s2, 128")
    E("    s_lshl_b32 s46, s57, 5")
    E("    s_mul_i32 s47, s46, 1152")
    E("    s_lshl_b32 s58, s46, 2")
    E(f"    s_add_u32 s58, s58, {WS_H}")
    E("    s_add_u32 s62, s38, s58")
    E("    s_addc_u32 s63, s39, 0")
    E("    s_load_dwordx16 s[64:79], s[62:63], 0")
    E("    s_load_dwordx16 s[80:95], s[62:63], 64")
    E("    v_cmp_gt_u32 vcc, 288, v0")
    E("    s_and_saveexec_b64 s[44:45], vcc")
    E("    s_cbranch_execz K3_exit")
    for j in range(32):
        E(f"    buffer_load_dword v{32+j}, v1, s[40:43], s47 offen")
        if j < 31:
            E("    s_add_u32 s47, s47, 1152")
    E("    v_mov_b32 v20, 0")
    E("    v_mov_b32 v21, 0")
    E("    s_waitcnt vmcnt(0) lgkmcnt(0)")
    for j in range(32):
        E(f"    v_lshlrev_b32 v22, 16, v{32+j}")
        E(f"    v_and_b32 v23, 0xffff0000, v{32+j}")
        E(f"    v_fmac_f32 v20, s{64+j}, v22")
        E(f"    v_fmac_f32 v21, s{64+j}, v23")
    E("    s_mul_i32 s46, s57, 2304")
    E(f"    s_add_u32 s46, s46, {WS_DSUM}")
    E("    v_lshlrev_b32 v22, 3, v0")
    E("    buffer_store_dwordx2 v[20:21], v22, s[48:51], s46 offen")
    E("K3_exit:")
    E("    s_endpgm")
    kd(name, 96)

def gen_k4():
    name = "k4_final_kernel"
    kernel_begin(name)
    E("    s_cmp_ge_u32 s2, 9")
    E("    s_cbranch_scc1 K4_exit")
    load_ptrs()
    E("    v_and_b32 v1, 63, v0")
    E("    v_lshlrev_b32 v1, 2, v1")
    E("    s_lshl_b32 s46, s2, 8")
    E("    v_add_u32 v1, s46, v1")
    E("    v_lshrrev_b32 v2, 6, v0")
    E("    s_mov_b32 s47, 2304")
    E("    v_mul_lo_u32 v3, v2, s47")
    E("    v_lshlrev_b32 v4, 5, v3")
    E("    v_add_u32 v4, v4, v1")
    E("    v_mul_u32_u24 v5, 36, v3")
    E("    v_add_u32 v5, v5, v1")
    E("    s_waitcnt lgkmcnt(0)")
    srd(48, 38, WS_SIZE)
    srd(40, 16, 1152)
    srd(52, 34, 1152)
    E(f"    s_mov_b32 s47, {WS_PSUM}")
    for i in range(32):
        E(f"    buffer_load_dword v{16+i}, v4, s[48:51], s47 offen")
        if i < 31:
            E("    s_add_u32 s47, s47, 2304")
    E(f"    s_mov_b32 s47, {WS_DSUM}")
    for i in range(36):
        E(f"    buffer_load_dword v{48+i}, v5, s[48:51], s47 offen")
        if i < 35:
            E("    s_add_u32 s47, s47, 2304")
    E("    v_lshrrev_b32 v6, 1, v1")
    E("    buffer_load_ushort v7, v6, s[40:43], 0 offen")
    E("    s_waitcnt vmcnt(1)")
    sum16(16); sum16(32)
    E("    v_add_f32 v16, v16, v32")
    sum16(48); sum16(64)
    E("    v_add_f32 v48, v48, v64")
    for i in range(80, 84):
        E(f"    v_add_f32 v48, v48, v{i}")
    E("    v_lshlrev_b32 v8, 2, v0")
    E("    ds_write_b32 v8, v16")
    E("    ds_write_b32 v8, v48 offset:1024")
    E("    s_waitcnt lgkmcnt(0)")
    E("    s_barrier")
    E("    v_and_b32 v8, 63, v0")
    E("    v_lshlrev_b32 v8, 2, v8")
    for k in range(4):
        E(f"    ds_read_b32 v{16+k}, v8 offset:{k*256}")
        E(f"    ds_read_b32 v{20+k}, v8 offset:{1024+k*256}")
    E("    s_waitcnt lgkmcnt(0) vmcnt(0)")
    E("    v_add_f32 v16, v16, v17")
    E("    v_add_f32 v18, v18, v19")
    E("    v_add_f32 v16, v16, v18")
    E("    v_add_f32 v20, v20, v21")
    E("    v_add_f32 v22, v22, v23")
    E("    v_add_f32 v20, v20, v22")
    bf16r(16, 16)
    bf16r(20, 20)
    E(f"    v_mul_f32 v21, {f32hex(-1.4426950408889634)}, v20")
    E("    v_exp_f32 v21, v21")
    E("    s_nop 1")
    E("    v_add_f32 v21, 1.0, v21")
    E("    v_rcp_f32 v22, v21")
    E("    s_nop 1")
    E("    v_mul_f32 v23, v20, v22")
    E("    v_fma_f32 v24, -v21, v23, v20")
    E("    v_fma_f32 v23, v24, v22, v23")
    bf16r(23, 23)
    E("    v_mul_f32 v23, v16, v23")
    bf16r(23, 23)
    E("    v_lshlrev_b32 v7, 16, v7")
    E("    v_add_f32 v23, v7, v23")
    E("    v_cvt_pk_bf16_f32 v23, v23, v23")
    E("    v_cmp_gt_u32 vcc, 64, v0")
    E("    s_and_saveexec_b64 s[44:45], vcc")
    E("    s_cbranch_execz K4_exit")
    E("    buffer_store_short v23, v6, s[52:55], 0 offen")
    E("K4_exit:")
    E("    s_endpgm")
    kd(name, 88)

E(HEADER.rstrip("\n"))
E("; @launch kernel=k1_proj_kernel grid=(272,1,1) block=(256,1,1) lds=16384")
E(f"; @launch kernel=k2_attn_kernel grid=({16*NSPLIT},1,1) block=(256,1,1) lds=16640")
E("; @launch kernel=k3_out_kernel grid=(272,1,1) block=(320,1,1) lds=4096")
E("; @launch kernel=k4_final_kernel grid=(9,1,1) block=(256,1,1) lds=2048")
E('.amdgcn_target "amdgcn-amd-amdhsa--gfx950"')
E(".text")
gen_k1(); gen_k2(); gen_k3(); gen_k4()
emit_kds()
open('recurrent_scan__gqa_block_cached__glu_gated_geglu__decode.s', 'w').write("\n".join(out) + "\n")
print("lines:", len(out))
```
